```python
import torch

def _softmax(x, axis=-1):
    return torch.softmax(x, dim=axis)
def _gelu(x):
    return torch.nn.functional.gelu(x, approximate="tanh")
def _silu(x):
    return torch.nn.functional.silu(x)
def _sigmoid(x):
    return torch.sigmoid(x)
def _layernorm(x, axis=-1, eps=1e-5):
    m = x.mean(dim=axis, keepdim=True)
    v = x.var(dim=axis, keepdim=True, unbiased=False)
    return (x - m) / torch.sqrt(v + eps)
def _scatter_add(tgt, idx, src, axis=0):
    return tgt.clone().index_add_(axis, idx, src)
def _segment_sum(src, seg, n):
    out = torch.zeros((n,) + src.shape[1:], dtype=src.dtype)
    return out.index_add_(0, seg, src)
def _pad(x, pw):
    flat = tuple(v for pair in reversed(pw) for v in pair)
    return torch.nn.functional.pad(x, flat)

kernel_name = 'standalone__paged_block_table_kv_pagedattention__decode'

def setup_inputs():

    _w = (lambda a: (lambda t: t.to(torch.bfloat16) if t.is_floating_point() else t)(torch.as_tensor(a)))
    B, Hq, Hkv, Sq, Skv, D = 1, 32, 32, 1, 4096, 128
    bs = 16
    nbps = max(1, Skv // bs)
    num_phys = B * nbps + 4
    bt = torch.randperm(num_phys)[: B * nbps].reshape(B, nbps).to(torch.int64)
    cl = (nbps * bs - (torch.arange(1, B + 1, dtype=torch.int64) * 2654435761) % max(1, nbps * bs // 2)).to(torch.int64)
    return {
        "q": _w((lambda *s: torch.randn(*s, dtype=torch.bfloat16) * 0.8)(B, Hq, Sq, D)),
        "k_cache": _w((lambda *s: torch.randn(*s, dtype=torch.bfloat16) * 0.8)(num_phys, bs, Hkv, D)),
        "v_cache": _w((lambda *s: torch.randn(*s, dtype=torch.bfloat16) * 0.05)(num_phys, bs, Hkv, D)),
        "block_table": _w(bt),
        "context_lens": _w(cl),
    }

def reference(q, k_cache, v_cache, block_table, context_lens):
    B, Hq, Sq, D = q.shape
    bs = k_cache.shape[1]
    Hkv = k_cache.shape[2]
    nbps = block_table.shape[1]
    Skv = nbps * bs
    bt = block_table.reshape(-1)
    k = (lambda x, *d: x.permute(*d))(k_cache[bt].reshape(B, Skv, Hkv, D), 0, 2, 1, 3)
    v = (lambda x, *d: x.permute(*d))(v_cache[bt].reshape(B, Skv, Hkv, D), 0, 2, 1, 3)
    g = Hq // Hkv
    qg = q.reshape(B, Hkv, g, Sq, D)
    scores = torch.einsum("bhgqd,bhkd->bhgqk", qg, k) * (D ** -0.5)
    pos = torch.arange(Skv)
    msk = pos[None, :] < context_lens[:, None]
    scores = torch.where(msk[:, None, None, None, :], scores, -1e9)
    p = _softmax(scores, axis=-1)
    out = torch.einsum("bhgqk,bhkd->bhgqd", p, v)
    return out.reshape(B, Hq, Sq, D)
```

```python
import sys, math, struct

NAME = "standalone__paged_block_table_kv_pagedattention__decode"
def f2u(x): return struct.unpack("<I", struct.pack("<f", x))[0]
C_SCALE = f2u(math.log2(math.e) / math.sqrt(128.0))
KV_BYTES = 260 * 131072
LOADMOD = sys.argv[2] if len(sys.argv) > 2 else ""

hdr = open("cdna_kernels/%s.s.ref" % NAME).read().split("; @launch")[0]
o = []
def E(s): o.append(s)

E(hdr.rstrip("\n"))
E("; @launch kernel=pa_partial_kernel grid=(256,1,1) block=(1024,1,1) lds=36864")
E("; @launch kernel=pa_combine_kernel grid=(32,1,1) block=(128,1,1) lds=0")
E('.amdgcn_target "amdgcn-amd-amdhsa--gfx950"')
E(".text")
E(".globl pa_partial_kernel")
E(".p2align 8")
E(".type pa_partial_kernel,@function")
E("pa_partial_kernel:")
E("""
    s_cmp_ge_u32 s2, 256
    s_cbranch_scc1 L_p_end
    s_load_dwordx16 s[4:19], s[0:1], 0
    v_lshrrev_b32 v4, 6, v0
    v_and_b32 v1, 63, v0                 ; lane
    s_and_b32 s36, s2, 7
    v_readfirstlane_b32 s38, v4
    s_lshr_b32 s37, s2, 3                ; split
    s_lshl_b32 s3, s36, 10               ; hg*1024
    v_lshl_add_u32 v3, v1, 4, s3
    s_lshl_b32 s56, s38, 13              ; wave*8192
    v_add_u32 v2, s56, v3
    s_lshl_b32 s57, s37, 2               ; split*4
    s_waitcnt lgkmcnt(0)
    s_load_dword s39, s[12:13], 0
""")
for i in range(8):
    E(f"    s_load_dword s{40+i}, s[10:11], s57 offset:{128*i}")
E(f"""
    s_mov_b32 s28, s4
    s_and_b32 s29, s5, 0xffff
    s_mov_b32 s30, 8192
    s_mov_b32 s31, 0x20000
    buffer_load_dwordx4 v[4:7], v3, s[28:31], 0 offen
    s_mov_b32 s20, s6
    s_and_b32 s21, s7, 0xffff
    s_mov_b32 s22, {KV_BYTES}
    s_mov_b32 s23, 0x20000
    s_mov_b32 s24, s8
    s_and_b32 s25, s9, 0xffff
    s_mov_b32 s26, {KV_BYTES}
    s_mov_b32 s27, 0x20000
    s_mov_b32 s32, s18
    s_and_b32 s33, s19, 0xffff
    s_mov_b32 s34, 0x200000
    s_mov_b32 s35, 0x20000
    s_lshl_b32 s58, s37, 4
    s_add_u32 s58, s58, s38
    s_waitcnt lgkmcnt(0)
    s_cmp_lt_i32 s39, 1
    s_cselect_b32 s59, 0, -1             ; q mask
    s_cselect_b32 s39, 4096, s39
    s_min_i32 s39, s39, 4096
""")
for i in range(8):
    E(f"""    s_lshl_b32 s{40+i}, s{40+i}, 17
    s_add_u32 s60, s58, {512*i}
    s_cmp_lt_u32 s60, s39
    s_cselect_b32 s{40+i}, s{40+i}, {KV_BYTES}
    s_cselect_b32 s{48+i}, 0, 0xff800000
    buffer_load_dwordx4 v[{8+4*i}:{11+4*i}], v2, s[20:23], s{40+i} offen {LOADMOD}""")
for i in range(8):
    E(f"    buffer_load_dwordx4 v[{40+4*i}:{43+4*i}], v2, s[24:27], s{40+i} offen {LOADMOD}")
E("""
    v_lshrrev_b32 v88, 4, v1             ; h = lane>>4
    v_and_b32 v89, 15, v1                ; c = lane&15
    s_lshl_b32 s60, s38, 2
    v_lshl_add_u32 v90, v88, 6, s60
    v_lshlrev_b32 v91, 2, v1
    s_lshl_b32 s61, s38, 11
    v_lshl_add_u32 v92, v1, 4, s61
""")
for j in range(8):
    E(f"    v_mov_b32 v{80+j}, 0")
E("    s_waitcnt vmcnt(16)")
for j in range(4):
    E(f"    v_and_b32 v{4+j}, s59, v{4+j}")
for i in range(8):
    E(f"    s_waitcnt vmcnt({15-i})")
    k = 8 + 4*i
    E(f"    v_dot2_f32_bf16 v{72+i}, v{k}, v4, 0")
    E(f"    v_dot2_f32_bf16 v{72+i}, v{k+1}, v5, v{72+i}")
    E(f"    v_dot2_f32_bf16 v{72+i}, v{k+2}, v6, v{72+i}")
    E(f"    v_dot2_f32_bf16 v{72+i}, v{k+3}, v7, v{72+i}")
E("    s_nop 3")
for r in (8, 4, 2, 1):
    for i in range(8):
        E(f"    v_add_f32_dpp v{72+i}, v{72+i}, v{72+i} row_ror:{r} row_mask:0xf bank_mask:0xf")
for i in range(8):
    E(f"    v_add_f32 v{72+i}, s{48+i}, v{72+i}")
E("""
    v_max3_f32 v93, v72, v73, v74
    v_max3_f32 v94, v75, v76, v77
    v_max3_f32 v93, v93, v78, v79
    v_max_f32 v93, v93, v94
    ds_write_b32 v90, v93 offset:32768
    s_waitcnt lgkmcnt(0)
    s_barrier
    ds_read_b32 v93, v91 offset:32768
    s_waitcnt lgkmcnt(0)
""")
for r in (8, 4, 2, 1):
    E("    s_nop 1")
    E(f"    v_max_f32_dpp v93, v93, v93 row_ror:{r} row_mask:0xf bank_mask:0xf")
E(f"""
    v_max_f32 v93, 0xff7fffff, v93
    s_mov_b32 s62, {C_SCALE}
    v_mul_f32 v93, s62, v93              ; Mc
""")
for i in range(8):
    E(f"    v_fma_f32 v{72+i}, v{72+i}, s62, -v93")
for i in range(8):
    E(f"    v_exp_f32 v{72+i}, v{72+i}")
E("""    s_nop 0
    v_add_f32 v94, v72, v73
    v_add_f32 v95, v74, v75
    v_add_f32 v96, v76, v77
    v_add_f32 v97, v78, v79
    v_add_f32 v94, v94, v95
    v_add_f32 v96, v96, v97
    v_add_f32 v94, v94, v96              ; l (wave)
    ds_write_b32 v90, v94 offset:33024   ; l[h][wave]
""")
for i in range(8):
    E(f"    s_waitcnt vmcnt({7-i})")
    v = 40 + 4*i
    for j in range(4):
        E(f"    v_lshlrev_b32 v{96+2*j}, 16, v{v+j}")
        E(f"    v_and_b32 v{97+2*j}, 0xffff0000, v{v+j}")
    for j in range(8):
        E(f"    v_fmac_f32 v{80+j}, v{72+i}, v{96+j}")
E("""
    ds_write_b128 v92, v[80:83]
    ds_write_b128 v92, v[84:87] offset:1024
    s_waitcnt lgkmcnt(0)
    s_barrier
    s_cmp_ge_u32 s38, 2
    s_cbranch_scc1 L_p_end
    v_lshlrev_b32 v92, 4, v0
""")
for w in range(16):
    E(f"    ds_read_b128 v[{8+4*w}:{11+4*w}], v92 offset:{2048*w}")
E("    ds_read_b32 v94, v91 offset:33024")
for w in range(1, 16):
    E(f"    s_waitcnt lgkmcnt({16-w})")
    for j in range(4):
        E(f"    v_add_f32 v{8+j}, v{8+j}, v{8+4*w+j}")
E("    s_waitcnt lgkmcnt(0)")
for r in (8, 4, 2, 1):
    E("    s_nop 1")
    E(f"    v_add_f32_dpp v94, v94, v94 row_ror:{r} row_mask:0xf bank_mask:0xf")
E("""
    s_lshl_b32 s60, s37, 5
    s_lshl_b32 s61, s36, 2
    s_add_u32 s60, s60, s61              ; s*32 + hg*4
    s_lshl_b32 s63, s60, 9               ; *512 bytes
    s_lshl_b32 s64, s38, 4
    s_add_u32 s63, s63, s64
    v_lshlrev_b32 v95, 5, v1             ; lane*32 = h*512 + c*32
    buffer_store_dwordx4 v[8:11], v95, s[32:35], s63 offen
    s_cmp_lg_u32 s38, 0
    s_cbranch_scc1 L_p_end
    v_cmp_eq_u32 vcc, 0, v89
    s_and_saveexec_b64 s[66:67], vcc
    v_add_u32 v95, s61, v88              ; head
    v_lshlrev_b32 v95, 8, v95            ; *256
    s_lshl_b32 s64, s37, 3
    s_add_u32 s64, s64, 0x100000
    v_mov_b32 v96, v93
    v_mov_b32 v97, v94
    buffer_store_dwordx2 v[96:97], v95, s[32:35], s64 offen
L_p_end:
    s_endpgm
""")

E("""
.globl pa_combine_kernel
.p2align 8
.type pa_combine_kernel,@function
pa_combine_kernel:
    s_cmp_ge_u32 s2, 32
    s_cbranch_scc1 L_c_end
    s_load_dwordx2 s[4:5], s[0:1], 40    ; out
    s_load_dwordx2 s[6:7], s[0:1], 56    ; ws
    v_and_b32 v1, 31, v0
    v_lshlrev_b32 v2, 3, v1              ; *8
    v_lshlrev_b32 v3, 2, v0              ; d*4
    s_lshl_b32 s20, s2, 8                ; head*256
    s_add_u32 s20, s20, 0x100000
    s_lshl_b32 s21, s2, 9                ; head*512
    s_waitcnt lgkmcnt(0)
    s_mov_b32 s8, s6
    s_and_b32 s9, s7, 0xffff
    s_mov_b32 s10, 0x200000
    s_mov_b32 s11, 0x20000
    s_mov_b32 s12, s4
    s_and_b32 s13, s5, 0xffff
    s_mov_b32 s14, 8192
    s_mov_b32 s15, 0x20000
    buffer_load_dwordx2 v[4:5], v2, s[8:11], s20 offen
""")
for s in range(32):
    E(f"    buffer_load_dword v{16+s}, v3, s[8:11], s21 offen")
    if s != 31:
        E(f"    s_add_u32 s21, s21, 16384")
E("""
    s_waitcnt vmcnt(32)
    v_mov_b32 v6, v4
""")
for r in (8, 4, 2, 1):
    E("    s_nop 1")
    E(f"    v_max_f32_dpp v6, v6, v6 row_ror:{r} row_mask:0xf bank_mask:0xf")
E("""
    s_nop 1
    v_readlane_b32 s22, v6, 0
    v_readlane_b32 s23, v6, 16
    s_nop 1
    v_mov_b32 v6, s22
    v_max_f32 v6, s23, v6                ; M
    v_sub_f32 v7, v4, v6
    v_exp_f32 v7, v7                     ; w_s
    s_nop 0
    v_mul_f32 v8, v7, v5                 ; w*l
""")
for r in (8, 4, 2, 1):
    E("    s_nop 1")
    E(f"    v_add_f32_dpp v8, v8, v8 row_ror:{r} row_mask:0xf bank_mask:0xf")
E("""
    s_nop 1
    v_readlane_b32 s22, v8, 0
    v_readlane_b32 s23, v8, 16
    s_nop 1
    v_mov_b32 v8, s22
    v_add_f32 v8, s23, v8                ; L
    v_rcp_f32 v8, v8
    v_mov_b32 v9, 0
""")
for s in range(32):
    E(f"    v_readlane_b32 s{24+s}, v7, {s}")
E("    s_nop 1")
for s in range(32):
    E(f"    s_waitcnt vmcnt({31-s})")
    E(f"    v_fmac_f32 v9, s{24+s}, v{16+s}")
E("""
    v_mul_f32 v9, v9, v8
    v_cvt_pk_bf16_f32 v9, v9, v9
    v_lshlrev_b32 v3, 1, v0              ; d*2
    s_lshl_b32 s21, s2, 8
    buffer_store_short v9, v3, s[12:15], s21 offen
L_c_end:
    s_endpgm
.section .rodata,"a"
.p2align 6
.amdhsa_kernel pa_partial_kernel
  .amdhsa_next_free_vgpr 104
  .amdhsa_next_free_sgpr 72
  .amdhsa_accum_offset 104
  .amdhsa_group_segment_fixed_size 0
  .amdhsa_kernarg_size 64
  .amdhsa_user_sgpr_count 2
  .amdhsa_user_sgpr_kernarg_segment_ptr 1
  .amdhsa_system_sgpr_workgroup_id_x 1
.end_amdhsa_kernel
.p2align 6
.amdhsa_kernel pa_combine_kernel
  .amdhsa_next_free_vgpr 48
  .amdhsa_next_free_sgpr 64
  .amdhsa_accum_offset 48
  .amdhsa_group_segment_fixed_size 0
  .amdhsa_kernarg_size 64
  .amdhsa_user_sgpr_count 2
  .amdhsa_user_sgpr_kernarg_segment_ptr 1
  .amdhsa_system_sgpr_workgroup_id_x 1
.end_amdhsa_kernel
""")
open(sys.argv[1], "w").write("\n".join(o))
```
